```python
import torch

def _softmax(x, axis=-1):
    return torch.softmax(x, dim=axis)
def _gelu(x):
    return torch.nn.functional.gelu(x, approximate="tanh")
def _silu(x):
    return torch.nn.functional.silu(x)
def _sigmoid(x):
    return torch.sigmoid(x)
def _layernorm(x, axis=-1, eps=1e-5):
    m = x.mean(dim=axis, keepdim=True)
    v = x.var(dim=axis, keepdim=True, unbiased=False)
    return (x - m) / torch.sqrt(v + eps)
def _scatter_add(tgt, idx, src, axis=0):
    return tgt.clone().index_add_(axis, idx, src)
def _segment_sum(src, seg, n):
    out = torch.zeros((n,) + src.shape[1:], dtype=src.dtype)
    return out.index_add_(0, seg, src)
def _pad(x, pw):
    flat = tuple(v for pair in reversed(pw) for v in pair)
    return torch.nn.functional.pad(x, flat)

kernel_name = 'concat_heads__gqa_block_cached__gqa_block_cached__near_ridge'

def setup_inputs():

    _w = (lambda a: (lambda t: t.to(torch.bfloat16) if t.is_floating_point() else t)(torch.as_tensor(a)))
    def _A_setup():
        B, Sq, D = 8, 224, 640
        Hq, Hkv, Sk, Dh = 32, 32, 512, 192
        assert Hq % Hkv == 0, (Hq, Hkv)
        return {
            "x": _w((lambda *s: torch.randn(*s, dtype=torch.bfloat16) * 0.8)(B, Sq, D)),
            "k_cache": _w((lambda *s: torch.randn(*s, dtype=torch.bfloat16) * 0.8)(B, Hkv, Sk, Dh)),
            "v_cache": _w((lambda *s: torch.randn(*s, dtype=torch.bfloat16) * 0.05)(B, Hkv, Sk, Dh)),
            "wq": _w((lambda *s: torch.randn(*s, dtype=torch.bfloat16) * 0.8)(D, Hq * Dh) * (D ** -0.5)),
            "wo": _w((lambda *s: torch.randn(*s, dtype=torch.bfloat16) * 0.05)(Hq * Dh, D) * ((Hq * Dh) ** -0.5)),
        }
    _A_in = _A_setup()

    def _B_setup():
        B, Sq, D = 8, 224, 640
        Hq, Hkv, Sk, Dh = 32, 32, 512, 192
        assert Hq % Hkv == 0, (Hq, Hkv)
        return {
            "x": _w((lambda *s: torch.randn(*s, dtype=torch.bfloat16) * 0.8)(B, Sq, D)),
            "k_cache": _w((lambda *s: torch.randn(*s, dtype=torch.bfloat16) * 0.8)(B, Hkv, Sk, Dh)),
            "v_cache": _w((lambda *s: torch.randn(*s, dtype=torch.bfloat16) * 0.05)(B, Hkv, Sk, Dh)),
            "wq": _w((lambda *s: torch.randn(*s, dtype=torch.bfloat16) * 0.8)(D, Hq * Dh) * (D ** -0.5)),
            "wo": _w((lambda *s: torch.randn(*s, dtype=torch.bfloat16) * 0.05)(Hq * Dh, D) * ((Hq * Dh) ** -0.5)),
        }
    _B_in = _B_setup()

    return {
        "A_x": _A_in["x"],
        "A_k_cache": _A_in["k_cache"],
        "A_v_cache": _A_in["v_cache"],
        "A_wq": _A_in["wq"],
        "A_wo": _A_in["wo"],
        "B_x": _B_in["x"],
        "B_k_cache": _B_in["k_cache"],
        "B_v_cache": _B_in["v_cache"],
        "B_wq": _B_in["wq"],
        "B_wo": _B_in["wo"],
    }

def reference(A_x, A_k_cache, A_v_cache, A_wq, A_wo, B_x, B_k_cache, B_v_cache, B_wq, B_wo):
    def _A_ref(x, k_cache, v_cache, wq, wo):
        B, Sq, D = x.shape
        Hq, Dh = 32, 192
        Hkv = k_cache.shape[1]
        rep = Hq // Hkv
        q = (lambda x, *d: x.permute(*d))((x @ wq).reshape(B, Sq, Hq, Dh), 0, 2, 1, 3)
        k = (lambda x, n, axis: torch.repeat_interleave(x, n, dim=axis))(k_cache, rep, axis=1)
        v = (lambda x, n, axis: torch.repeat_interleave(x, n, dim=axis))(v_cache, rep, axis=1)
        scores = torch.einsum("bhqd,bhkd->bhqk", q, k) * (Dh ** -0.5)
        p = _softmax(scores, axis=-1)
        o = torch.einsum("bhqk,bhkd->bhqd", p, v)
        return (lambda x, *d: x.permute(*d))(o, 0, 2, 1, 3).reshape(B, Sq, Hq * Dh) @ wo

    def _B_ref(x, k_cache, v_cache, wq, wo):
        B, Sq, D = x.shape
        Hq, Dh = 32, 192
        Hkv = k_cache.shape[1]
        rep = Hq // Hkv
        q = (lambda x, *d: x.permute(*d))((x @ wq).reshape(B, Sq, Hq, Dh), 0, 2, 1, 3)
        k = (lambda x, n, axis: torch.repeat_interleave(x, n, dim=axis))(k_cache, rep, axis=1)
        v = (lambda x, n, axis: torch.repeat_interleave(x, n, dim=axis))(v_cache, rep, axis=1)
        scores = torch.einsum("bhqd,bhkd->bhqk", q, k) * (Dh ** -0.5)
        p = _softmax(scores, axis=-1)
        o = torch.einsum("bhqk,bhkd->bhqd", p, v)
        return (lambda x, *d: x.permute(*d))(o, 0, 2, 1, 3).reshape(B, Sq, Hq * Dh) @ wo

    a = _A_ref(A_x, A_k_cache, A_v_cache, A_wq, A_wo)
    b = _B_ref(B_x, B_k_cache, B_v_cache, B_wq, B_wo)
    return torch.concatenate([a, b], axis=-1)
```

```python
import re

REG_RE = re.compile(r'^(-?)\|?([vas])(?:(\d+)|\[(\d+):(\d+)\])\|?$')

def regs_of(tok):
    tok = tok.strip()
    if tok == 'vcc': return {('s', 106), ('s', 107)}
    if tok == 'exec': return {('s', 126), ('s', 127)}
    if tok == 'm0': return {('s', 124)}
    m = REG_RE.match(tok)
    if not m: return set()
    f = m.group(2)
    if m.group(3) is not None: return {(f, int(m.group(3)))}
    return {(f, i) for i in range(int(m.group(4)), int(m.group(5)) + 1)}

TRANS = ('v_exp_f32', 'v_rcp_f32', 'v_log_f32', 'v_rsq_f32', 'v_sqrt_f32', 'v_sin_f32', 'v_cos_f32')

class I:
    def __init__(self, text):
        self.text = text.strip()
        t = self.text.split(';')[0].strip()
        self.label = None
        self.defs = set(); self.uses = set(); self.srcc = set(); self.kind = 'other'
        self.target = None
        if t.endswith(':'):
            self.label = t[:-1]; self.kind = 'label'; self.mn = ''; return
        if t == '' or t.startswith('.'):
            self.kind = 'dir'; self.mn = ''; return
        parts = t.split(None, 1)
        mn = parts[0]; self.mn = mn
        rest = parts[1] if len(parts) > 1 else ''
        ops = [o.strip() for o in rest.split(',')] if rest else []
        mods = ''
        if ops:
            lp = ops[-1].split(None, 1)
            if len(lp) > 1 and not mn.startswith('s_waitcnt'):
                ops[-1] = lp[0]; mods = lp[1]
        self.ops = ops; self.mods = mods
        R = regs_of
        if mn.startswith('v_mfma'):
            self.kind = 'mfma'
            self.defs = R(ops[0]); self.ab = R(ops[1]) | R(ops[2]); self.srcc = R(ops[3])
            self.uses = self.ab | self.srcc
            self.passes = 4 if '16x16x32' in mn else 8
        elif mn.startswith('v_permlane') :
            self.kind = 'valu'; self.perm = True
            self.defs = R(ops[0]) | R(ops[1]); self.uses = set(self.defs)
        elif mn.startswith('v_cmp'):
            self.kind = 'valu'
            self.defs = R(ops[0]); self.uses = set().union(*[R(o) for o in ops[1:]])
        elif mn.startswith('v_readfirstlane') or mn.startswith('v_readlane'):
            self.kind = 'valu'; self.lanerd = True
            self.defs = R(ops[0]); self.uses = set().union(*[R(o) for o in ops[1:]])
        elif mn.startswith('v_'):
            self.kind = 'valu'
            self.defs = R(ops[0]); self.uses = set().union(*[R(o) for o in ops[1:]]) if len(ops) > 1 else set()
            if mn.startswith('v_fmac') or mn.startswith('v_dot2c'): self.uses |= self.defs
            if '_co_' in mn:
                self.defs |= R(ops[1]); self.uses = set().union(*[R(o) for o in ops[2:]])
        elif mn.startswith('ds_read'):
            self.kind = 'ds'; self.defs = R(ops[0]); self.uses = R(ops[1])
        elif mn.startswith('ds_write'):
            self.kind = 'ds'; self.uses = set().union(*[R(o) for o in ops])
        elif mn.startswith('buffer_load') or mn.startswith('global_load'):
            self.kind = 'vmem'
            if ' lds' in (' ' + mods) or '_lds_' in mn:
                self.dma = True
                self.uses = set().union(*[R(o) for o in ops]) | {('s', 124)}
            else:
                self.defs = R(ops[0]); self.uses = set().union(*[R(o) for o in ops[1:]])
        elif mn.startswith('buffer_store') or mn.startswith('global_store') or mn.startswith('buffer_atomic') or mn.startswith('global_atomic'):
            self.kind = 'vmem'; self.store = True
            self.uses = set().union(*[R(o) for o in ops])
            self.data = R(ops[0]) if mn.startswith('buffer') else R(ops[1])
            self.wide = mn.endswith('x4') or mn.endswith('x3')
        elif mn.startswith('buffer_'):
            self.kind = 'vmem'
        elif mn.startswith('s_waitcnt'):
            self.kind = 'wait'
            self.vm = None; self.lgkm = None
            m = re.search(r'vmcnt\((\d+)\)', t); self.vm = int(m.group(1)) if m else None
            m = re.search(r'lgkmcnt\((\d+)\)', t); self.lgkm = int(m.group(1)) if m else None
        elif mn == 's_nop':
            self.kind = 'nop'; self.n = int(ops[0], 0) + 1
        elif mn in ('s_branch',) or mn.startswith('s_cbranch'):
            self.kind = 'branch'; self.target = ops[0]; self.cond = mn != 's_branch'
        elif mn == 's_endpgm':
            self.kind = 'end'
        elif mn.startswith('s_load') or mn.startswith('s_memtime') or mn.startswith('s_memrealtime') or mn.startswith('s_buffer_load'):
            self.kind = 'smem'; self.defs = R(ops[0]); self.uses = set().union(*[R(o) for o in ops[1:]]) if len(ops) > 1 else set()
        elif mn.startswith('s_'):
            self.kind = 'salu'
            if mn.startswith('s_cmp') or mn in ('s_barrier', 's_setprio', 's_sleep', 's_bitcmp1_b32', 's_bitcmp0_b32'):
                self.uses = set().union(*[R(o) for o in ops]) if ops else set()
            else:
                self.defs = R(ops[0]); self.uses = set().union(*[R(o) for o in ops[1:]]) if len(ops) > 1 else set()
        else:
            raise ValueError('unknown instr ' + t)
    @property
    def trans(self): return self.mn.replace('_e32', '').replace('_e64', '') in TRANS
    def states(self):
        if self.kind in ('label', 'dir'): return 0
        if self.kind == 'nop': return self.n
        return 1

def vec(rs): return {r for r in rs if r[0] in 'va'}
def sca(rs): return {r for r in rs if r[0] == 's'}

def need(p, c):
    n = 0
    if p.kind == 'valu':
        pv = vec(p.defs); ps = sca(p.defs)
        if c.kind == 'mfma' and pv & c.uses: n = max(n, 2)
        if c.kind == 'valu':
            if getattr(c, 'perm', False) and pv & c.uses: n = max(n, 2)
            if getattr(c, 'lanerd', False) and pv & c.uses: n = max(n, 1)
            if p.trans and not c.trans and pv & c.uses: n = max(n, 1)
            if ps & c.uses: n = max(n, 4 if getattr(c, 'lanerd', False) else 2)
            if 'dpp' in c.text and pv & c.uses: n = max(n, 2)
        if c.kind == 'vmem' and ps & c.uses: n = max(n, 5)
        if c.kind == 'salu' and ps & c.uses: n = max(n, 1)
    if p.kind == 'mfma':
        big = {4: (6, 8, 3), 8: (10, 12, 7)}[p.passes]
        if c.kind == 'mfma':
            if p.defs & c.ab: n = max(n, big[1])
            if p.defs & c.srcc and not (p.defs == c.srcc and p.passes == c.passes): n = max(n, big[0])
            if p.defs & c.defs and not (p.defs == c.defs and p.passes == c.passes): n = max(n, big[0])
        elif c.kind in ('valu', 'ds', 'vmem'):
            if p.defs & (c.uses | c.defs): n = max(n, big[1])
            if c.kind == 'valu' and p.srcc & c.defs: n = max(n, big[2])
    if p.kind == 'vmem' and getattr(p, 'store', False) and p.wide:
        if p.data & c.defs: n = max(n, 2)
    if p.kind == 'salu' and ('s', 124) in p.defs and getattr(c, 'dma', False): n = max(n, 1)
    return n

LOOK = 14
def pad_hazards(ins):
    for _ in range(50):
        changed = False
        out = []
        for c in ins:
            if c.kind not in ('label', 'dir'):
                dist = 0; req = 0
                for p in reversed(out):
                    if p.kind == 'branch' and not p.cond: break
                    if p.kind == 'end': break
                    if dist >= LOOK: break
                    k = need(p, c)
                    if k > dist: req = max(req, k - dist)
                    dist += p.states()
                if req > 0:
                    out.append(I(f's_nop {req-1}')); changed = True
            out.append(c)
        ins = out
        labels = {x.label: i for i, x in enumerate(ins) if x.kind == 'label'}
        fix = {}
        for i, b in enumerate(ins):
            if b.kind != 'branch': continue
            tail = []
            d = 0
            for p in reversed(ins[:i + 1]):
                if p is not b and p.kind == 'branch' and not p.cond: break
                tail.append(p); d += p.states()
                if d >= LOOK: break
            j = labels[b.target]; dh = 0
            for c in ins[j:]:
                if dh >= LOOK: break
                if c.kind not in ('label', 'dir'):
                    dist = dh
                    for p in tail:
                        k = need(p, c)
                        if k > dist: fix[i] = max(fix.get(i, 0), k - dist)
                        dist += p.states()
                    if c.kind == 'end' or (c.kind == 'branch' and not c.cond): break
                dh += c.states()
        if fix:
            out = []
            for i, x in enumerate(ins):
                if i in fix: out.append(I(f's_nop {fix[i]-1}'))
                out.append(x)
            ins = out; changed = True
        if not changed: return ins
    raise RuntimeError('hazard padding did not converge')

def auto_wait(ins, vm_auto=True):
    out = []
    lq = []
    vq = []
    at_label = {}
    dead = False
    def norm(q):
        q = list(q)
        while q and not q[0]: q.pop(0)
        return [frozenset(x) for x in q]
    def suffix(a, b):
        return len(a) <= len(b) and b[len(b) - len(a):] == a
    seen = set()
    def check(lbl, where):
        st = (norm(lq), norm(vq))
        if lbl in at_label:
            rec = at_label[lbl]
            if where == 'fallthrough':
                ok = suffix(rec[0], st[0]) and suffix(rec[1], st[1])
                at_label[lbl] = st
            elif lbl in seen:
                ok = suffix(st[0], rec[0]) and suffix(st[1], rec[1])
            else:
                ok = st == rec
            if not ok:
                raise RuntimeError(f'pending queue mismatch at {lbl} ({where}):\n{rec}\n{st}')
        else:
            at_label[lbl] = st
    for c in ins:
        if c.kind == 'label':
            if dead:
                if c.label in at_label:
                    lq = [set(x) for x in at_label[c.label][0]]; vq = [set(x) for x in at_label[c.label][1]]
                else:
                    lq = []; vq = []
                    at_label[c.label] = ([], [])
                dead = False
            else:
                check(c.label, 'fallthrough')
            seen.add(c.label)
            out.append(c); continue
        if c.kind == 'dir': out.append(c); continue
        touched = c.uses | c.defs
        wl = None; wv = None
        for k, d in enumerate(lq):
            if d & touched: wl = len(lq) - 1 - k
        for k, d in enumerate(vq):
            if d & touched: wv = len(vq) - 1 - k
        if wl is not None or wv is not None:
            s = 's_waitcnt'
            if wv is not None:
                assert wv <= 63; s += f' vmcnt({wv})'; vq = vq[len(vq) - wv:] if wv else []
            if wl is not None:
                wl2 = min(wl, 15); s += f' lgkmcnt({wl2})'; lq = lq[len(lq) - wl2:] if wl2 else []
            out.append(I(s))
        if c.kind == 'wait':
            if c.lgkm is not None: lq = lq[len(lq) - c.lgkm:] if c.lgkm and c.lgkm <= len(lq) else ([] if not c.lgkm else lq)
            if c.vm is not None: vq = vq[len(vq) - c.vm:] if c.vm and c.vm <= len(vq) else ([] if not c.vm else vq)
        if c.kind == 'ds': lq.append(set(c.defs))
        if c.kind == 'smem':
            lq.append(set()); lq.append(set())
        if c.kind == 'vmem' and vm_auto and c.mn not in ('buffer_inv', 'buffer_wbl2'): vq.append(set(c.defs))
        if c.kind == 'branch':
            check(c.target, 'branch')
            if not c.cond: dead = True
        if c.kind == 'end': dead = True
        out.append(c)
    return out

class Prog:
    def __init__(self): self.ins = []
    def __call__(self, text):
        for line in text.split('\n'):
            if line.strip(): self.ins.append(I(line))
    def finish(self):
        ins = auto_wait(self.ins)
        ins = pad_hazards(ins)
        return ins
    @staticmethod
    def text(ins):
        return '\n'.join((x.text if x.kind in ('label', 'dir') else '  ' + x.text) for x in ins) + '\n'
```

```python
import struct, math, sys
from asm import Prog, I

def f2h(x): return '0x%08x' % struct.unpack('<I', struct.pack('<f', x))[0]

class Cfg:
    D = 4
    RA = 1
    kv_flags = 'nt'
    wq_flags = 'nt'
    x_flags = ''
    wo_flags = 'nt'
    o_store_flags = ''
    wof_store_flags = ''
    k2_o_flags = ''
    k2_w_flags = ''
    stamps = False
    dumpq = False
    maxout = 63
    thr = 16384.0
    rot = True
    roll = True

SLOT = 26624; PAIR = 2 * SLOT; VOFF = 12288; XOFF = 24576
LDS1 = 6 * SLOT
WOF = 0x3000000
STAMPOFF = 0x4000000
K1 = 'qattn_kernel'; K2 = 'oproj_kernel'

def ACC(m, c): return 160 + (m * 2 + c) * 4
def QF(s, c): return 112 + (s * 2 + c) * 4
def SS(T, c): return 96 + (T * 2 + c) * 4
def PP(par, c): return 80 + (par * 2 + c) * 4
def NM(c): return 72 + 4 * c
def FB(i): return 40 + 4 * (i % 8)
def XF(ks, c): return 96 + (ks * 2 + c) * 4
ET = 32
TS = [28, 29]; LL = [26, 27]
VK = [20, 21]; VT = [22, 23, 24, 25]; VX = [16, 17, 18, 19]
VLANE16 = 15
def r4(b): return f'v[{b}:{b+3}]'
def r2(b): return f'v[{b}:{b+1}]'
def mfma(d, a, b, c): return f'v_mfma_f32_16x16x32_bf16 {r4(d)}, {r4(a)}, {r4(b)}, ' + (r4(c) if c is not None else '0')

sX, sW, sK, sV, sWS, sWO = 's[8:11]', 's[12:15]', 's[16:19]', 's[20:23]', 's[24:27]', 's[28:31]'

class Sched:
    def __init__(self): self.m = []; self.pre = {}
    def add(self, txt): self.m.append(txt)
    def at(self, i, txt): self.pre.setdefault(i, []).append(txt)
    def emit(self, P):
        for i, t in enumerate(self.m):
            for x in self.pre.get(i, []): P(x)
            P(t)
        for k in sorted(self.pre):
            if k >= len(self.m):
                for x in self.pre[k]: P(x)

def rd_tr(buf, m, extra):
    off = extra + 128 * (m >> 2)
    return [f'ds_read_b64_tr_b16 {r2(buf)}, v{VT[m & 3]} offset:{off}',
            f'ds_read_b64_tr_b16 {r2(buf + 2)}, v{VT[m & 3]} offset:{off + 6144}']
def rd_k(buf, T, s):
    return [f'ds_read_b128 {r4(buf)}, v{VK[s & 1]} offset:{6144 * T + 128 * (s >> 1)}']
def rd_x(ks, c):
    b = XF(ks, c)
    return [f'ds_read_b64 {r2(b)}, v{VX[2 * ks]} offset:{2048 * c}',
            f'ds_read_b64 {r2(b + 2)}, v{VX[2 * ks + 1]} offset:{2048 * c}']

def xreduce(P, op, v, t):
    P(f'v_mov_b32 v{t}, v{v}')
    P(f'v_permlane32_swap_b32 v{v}, v{t}')
    P(f'{op} v{v}, v{v}, v{t}')
    P(f'v_mov_b32 v{t}, v{v}')
    P(f'v_permlane16_swap_b32 v{v}, v{t}')
    P(f'{op} v{v}, v{v}, v{t}')

class K1Gen:
    def __init__(self, cfg):
        self.cfg = cfg; self.P = Prog(); self.nstamp = 0; self.rare = []
    def stamp(self):
        if not self.cfg.stamps: return
        P = self.P
        k = self.nstamp; self.nstamp += 1
        assert k < 16
        P('s_waitcnt lgkmcnt(0)')
        P('s_memtime s[62:63]')
        P('s_waitcnt lgkmcnt(0)')
        P('s_cmp_eq_u32 s42, 0')
        P(f's_cselect_b32 s{64+k}, s62, s{64+k}')
        P(f's_cselect_b32 s{80+k}, s{80+k}, s62')

    def qstep(self, first=False, last=False, delta=None):
        cfg = self.cfg; P = self.P; D = cfg.D
        P('s_barrier')
        S = Sched()
        order = [(ks, m) for ks in range(2) for m in range(12)] if not last else [(ks, m) for m in range(12) for ks in range(2)]
        pro = rd_x(0, 0) + rd_tr(FB(0), order[0][1], 12288 * order[0][0]) + rd_x(0, 1)
        if last: pro += rd_x(1, 0) + rd_x(1, 1)
        for f in range(1, D): pro += rd_tr(FB(f), order[f][1], 12288 * order[f][0])
        for x in pro: P(x)
        for f, (ks, m) in enumerate(order):
            if f + D < 24:
                k2, m2 = order[f + D]
                for x in rd_tr(FB(f + D), m2, 12288 * k2): S.at(2 * f, x)
            for c in range(2):
                S.add(mfma(ACC(m, c), FB(f), XF(ks, c), None if (first and ks == 0) else ACC(m, c)))
        if not last:
            for x in rd_x(1, 0): S.at(10, x)
            for x in rd_x(1, 1): S.at(12, x)
            pos = 2 * (24 - D) + 1
            for k, v in enumerate(VT + VX): S.at(min(pos + k // 2, 47), f'v_add_u32 v{v}, {delta}, v{v}')
        else:
            pos = 2 * (24 - D) + 1
            for k, (v, d) in enumerate(delta): S.at(min(pos + k // 2, 47), f'v_add_u32 v{v}, {d}, v{v}')
            for m2 in range(6):
                ops = []
                for c in range(2):
                    a0, a1, q = ACC(2 * m2, c), ACC(2 * m2 + 1, c), QF(m2, c)
                    for r in range(4): ops.append(f'v_mul_f32 v{a0+r}, s36, v{a0+r}')
                    for r in range(4): ops.append(f'v_mul_f32 v{a1+r}, s36, v{a1+r}')
                    ops.append(f'v_cvt_pk_bf16_f32 v{q}, v{a0}, v{a0+1}')
                    ops.append(f'v_cvt_pk_bf16_f32 v{q+2}, v{a1}, v{a1+1}')
                    ops.append(f'v_cvt_pk_bf16_f32 v{q+1}, v{a0+2}, v{a0+3}')
                    ops.append(f'v_cvt_pk_bf16_f32 v{q+3}, v{a1+2}, v{a1+3}')
                sw = []
                for c in range(2):
                    q = QF(m2, c)
                    sw += [f'v_permlane32_swap_b32 v{q}, v{q+2}', f'v_permlane32_swap_b32 v{q+1}, v{q+3}']
                for c in range(2):
                    q = QF(m2, c)
                    sw += [f'v_permlane16_swap_b32 v{q}, v{q+2}', f'v_permlane16_swap_b32 v{q+1}, v{q+3}']
                ops += sw
                start = 8 * (m2 + 1) + 2
                for k, x in enumerate(ops): S.at(start + (k * 8) // len(ops), x)
        S.emit(P)

    def sm_group(self, T, c, par, sub=None):
        e = ET + 4 * ((T * 2 + c) & 1); s = SS(T, c); p = PP(par, c) + 2 * T
        ops = []
        if sub is not None:
            for r in range(4): ops.append(f'v_sub_f32 v{s+r}, v{s+r}, v{sub}')
        for r in range(4): ops.append(f'v_exp_f32 v{e+r}, v{s+r}')
        ops.append(f'v_cvt_pk_bf16_f32 v{p}, v{e}, v{e+1}')
        ops.append(f'v_add_f32 v{e}, v{e}, v{e+1}')
        ops.append(f'v_cvt_pk_bf16_f32 v{p+1}, v{e+2}, v{e+3}')
        ops.append(f'v_add_f32 v{e+2}, v{e+2}, v{e+3}')
        if T == 0: ops.append(f'v_add_f32 v{TS[c]}, v{e}, v{e+2}')
        else:
            ops.append(f'v_add_f32 v{TS[c]}, v{TS[c]}, v{e}')
            ops.append(f'v_add_f32 v{TS[c]}, v{TS[c]}, v{e+2}')
        return ops
    def rowmax(self, P, c, dst, tmp):
        a, b = SS(0, c), SS(1, c)
        P(f'v_max3_f32 v{dst}, v{a}, v{a+1}, v{a+2}')
        P(f'v_max3_f32 v{tmp}, v{a+3}, v{b}, v{b+1}')
        P(f'v_max3_f32 v{dst}, v{dst}, v{b+2}, v{b+3}')
        P(f'v_max_f32 v{dst}, v{dst}, v{tmp}')
        xreduce(P, 'v_max_f32', dst, tmp)

    def astep(self, kind, par, name, dK=None, dV=None, ra_in=False, ra_out=False):
        cfg = self.cfg; P = self.P; D = cfg.D
        P('s_barrier')
        frags = []
        if kind != 'final': frags += [('k', T, s) for T in range(2) for s in range(6)]
        if kind != 'first': frags += [('v', m) for m in range(12)]
        base = 0 if kind != 'final' else 12
        def rd(f, fr):
            return rd_k(FB(base + f), fr[1], fr[2]) if fr[0] == 'k' else rd_tr(FB(base + f), fr[1], 0)
        S = Sched()
        if not ra_in:
            for f in range(D):
                for x in rd(f, frags[f]): P(x)
        n = len(frags)
        for f, fr in enumerate(frags):
            if f + D < n:
                for x in rd(f + D, frags[f + D]): S.at(2 * f, x)
            elif ra_out:
                j = f + D - n
                off = (8 - (base + n) % 8) % 8
                assert off == 0 or kind == 'first'
                for x in rd_k(FB(j), 0, j): S.at(2 * f, x)
            for c in range(2):
                if fr[0] == 'k':
                    T, s = fr[1], fr[2]
                    cin = SS(T, c) if s else (None if kind == 'first' else NM(c))
                    S.add(mfma(SS(T, c), FB(base + f), QF(s, c), cin))
                else:
                    m = fr[1]
                    S.add(mfma(ACC(m, c), FB(base + f), PP(par, c), None if self.pv_first else ACC(m, c)))
        if kind != 'first':
            S.at(1, f'v_add_f32 v{LL[0]}, v{LL[0]}, v{TS[0]}')
            S.at(2, f'v_add_f32 v{LL[1]}, v{LL[1]}, v{TS[1]}')
        if kind == 'mid':
            for k, v in enumerate(VK): S.at(2 * (12 - D) + 1 + k, f'v_add_u32 v{v}, {dK}, v{v}')
            for k, v in enumerate(VT): S.at(min(2 * (24 - D) + 1 + k, 47), f'v_add_u32 v{v}, {dV}, v{v}')
            ops = self.sm_group(0, 0, par ^ 1) + self.sm_group(0, 1, par ^ 1)
            for k, x in enumerate(ops): S.at(14 + (k * 11) // len(ops), x)
            ops = self.sm_group(1, 0, par ^ 1) + self.sm_group(1, 1, par ^ 1)
            for k, x in enumerate(ops): S.at(26 + (k * 13) // len(ops), x)
            S.at(41, f'v_max_f32 v1, v{TS[0]}, v{TS[1]}')
            S.at(43, f'v_cmp_lt_f32 vcc, s37, v1')
            S.emit(P)
            P(f's_cbranch_vccnz L_rare_{name}')
            P(f'L_ret_{name}:')
            self.rare.append((name, par ^ 1))
        elif kind == 'first':
            for k, v in enumerate(VK): S.at(2 * (12 - D) + 1 + k, f'v_add_u32 v{v}, {dK}, v{v}')
            if ra_out:
                for key in list(S.pre):
                    S.pre[key] = [x for x in S.pre[key] if not (key >= 2 * (n - D) and x.startswith('ds_read_b128'))]
            S.emit(P)
            if ra_out:
                for j in range(D):
                    for x in rd_k(FB(j), 0, j): P(x)
            for c in range(2):
                self.rowmax(P, c, 1 + 2 * c, 2 + 2 * c)
            for c in range(2):
                for r in range(4): P(f'v_sub_f32 v{NM(c)+r}, 0, v{1+2*c}')
                P(f'v_mov_b32 v{LL[c]}, 0')
            for T in range(2):
                for c in range(2):
                    for x in self.sm_group(T, c, par ^ 1, sub=1 + 2 * c): P(x)
        else:
            red = Prog()
            for c in range(2):
                xreduce(red, 'v_add_f32', LL[c], 1 + c)
            ops = [x.text for x in red.ins]
            ops = [ops[i + 6 * c] for i in range(6) for c in range(2)]
            ops += [f'v_rcp_f32 v{LL[0]}, v{LL[0]}', f'v_rcp_f32 v{LL[1]}, v{LL[1]}']
            for k, x in enumerate(ops): S.at(3 + k // 4, x)
            for k, (v, d) in enumerate(dV): S.at(min(2 * (12 - D) + 1 + k, 23), f'v_add_u32 v{v}, {d}, v{v}')
            for m2 in range(6):
                ops = []
                for c in range(2):
                    a0, a1 = ACC(2 * m2, c), ACC(2 * m2 + 1, c)
                    q = 96 + 4 * ((2 * m2 + c) % 4)
                    for r in range(4): ops.append(f'v_mul_f32 v{a0+r}, v{LL[c]}, v{a0+r}')
                    for r in range(4): ops.append(f'v_mul_f32 v{a1+r}, v{LL[c]}, v{a1+r}')
                    ops.append(f'v_cvt_pk_bf16_f32 v{q}, v{a0}, v{a0+1}')
                    ops.append(f'v_cvt_pk_bf16_f32 v{q+1}, v{a0+2}, v{a0+3}')
                    ops.append(f'v_cvt_pk_bf16_f32 v{q+2}, v{a1}, v{a1+1}')
                    ops.append(f'v_cvt_pk_bf16_f32 v{q+3}, v{a1+2}, v{a1+3}')
                    ops.append(f'buffer_store_dwordx4 {r4(q)}, v{VLANE16}, {sWS}, s{44+c} offen {cfg.o_store_flags}')
                    ops.append(f's_add_u32 s{44+c}, s{44+c}, 7168')
                start = max(4 * (m2 + 1) + 2, 8)
                for k, x in enumerate(ops): S.at(start + (k * 4) // len(ops), x)
            S.emit(P)

    def rare_block(self, name, par):
        P = self.P
        P(f'L_rare_{name}:')
        for c in range(2):
            self.rowmax(P, c, 1 + 2 * c, 2 + 2 * c)
        for c in range(2):
            d = 1 + 2 * c; sc = 2 + 2 * c
            P(f'v_max_f32 v{d}, 0, v{d}')
            P(f'v_sub_f32 v{sc}, 0, v{d}')
            P(f'v_exp_f32 v{sc}, v{sc}')
            for r in range(4): P(f'v_sub_f32 v{NM(c)+r}, v{NM(c)+r}, v{d}')
            P(f'v_mul_f32 v{LL[c]}, v{LL[c]}, v{sc}')
            for m in range(12):
                for r in range(4): P(f'v_mul_f32 v{ACC(m,c)+r}, v{ACC(m,c)+r}, v{sc}')
        for T in range(2):
            for c in range(2):
                for x in self.sm_group(T, c, par, sub=1 + 2 * c): P(x)
        P(f's_branch L_ret_{name}')

    def loader(self):
        cfg = self.cfg; P = self.P
        P('L_loader:')
        P('s_setprio 3')
        P('v_and_b32 v1, 63, v0')
        P('v_lshlrev_b32 v2, 4, v1')
        P('s_movk_i32 s46, 2731')
        for i in range(6):
            P(f'v_add_u32 v3, {64*i}, v1')
            P('v_mul_u32_u24 v4, s46, v3')
            P('v_lshrrev_b32 v4, 16, v4')
            P('v_bfe_u32 v5, v4, 1, 3')
            P('v_lshlrev_b32 v5, 4, v5')
            P(f'v_xor_b32 v{10+i}, v2, v5')
            if i < 3:
                P('v_bfe_u32 v5, v4, 1, 2')
                P('v_lshlrev_b32 v5, 5, v5')
                P(f'v_xor_b32 v{16+i}, v2, v5')
                P('v_mul_u32_u24 v6, 11904, v4')
                P(f'v_add_u32 v{20+i}, v6, v{16+i}')
        for j in range(4):
            P(f'v_add_u32 v3, {64*j}, v1')
            P('v_lshrrev_b32 v4, 3, v3')
            P('v_bfe_u32 v5, v4, 1, 3')
            P('v_lshlrev_b32 v5, 4, v5')
            P('v_xor_b32 v5, v2, v5')
            P('v_mul_u32_u24 v6, 1152, v4')
            P(f'v_add_u32 v{24+j}, v6, v5')
        P('s_movk_i32 s46, 1639')
        for i in range(5):
            P(f'v_add_u32 v3, {64*i}, v1')
            P('v_mul_u32_u24 v4, s46, v3')
            P('v_lshrrev_b32 v4, 16, v4')
            P('v_mul_u32_u24 v6, 640, v4')
            P('v_lshlrev_b32 v3, 4, v3')
            P(f'v_add_u32 v{28+i}, v6, v3')
        P('s_mul_i32 s54, s33, 286720')
        P('s_lshl_b32 s48, s50, 7')
        P('s_add_u32 s48, s48, s54')
        P('s_mul_i32 s49, s50, 786432')
        P('s_mul_i32 s53, s34, 768')
        P('s_add_u32 s49, s49, s53')
        P('s_lshl_b32 s51, s33, 5')
        P('s_lshl_b32 s53, s34, 1')
        P('s_add_u32 s51, s51, s53')
        P('s_mul_i32 s51, s51, 196608')
        P('s_mov_b32 s52, s51')
        steps = []
        for h in range(2):
            steps += [(h, 'q', j) for j in range(10)] + [(h, 'a', n) for n in range(17)]
        tix = {s: i for i, s in enumerate(steps)}
        NT = len(steps)
        items = []
        def atoms_q(h, j):
            base = (j % 3) * PAIR; A = []
            for gidx in range(7):
                pre = [f's_mov_b32 m0, {base + XOFF + 4096 * gidx}', f's_add_u32 s53, s48, {40960 * gidx}']
                for k in range(4):
                    A.append((pre if k == 0 else []) + [f'buffer_load_dwordx4 v{24+k}, {sX}, s53 offen offset:{1024*k} {cfg.x_flags} lds'])
            for gidx in range(8):
                pre = [f's_mov_b32 m0, {base + 3072 * gidx}', f's_add_u32 s54, s49, {98304 * gidx}']
                for k in range(3):
                    A.append((pre if k == 0 else []) + [f'buffer_load_dwordx4 v{20+k}, {sW}, s54 offen offset:{1024*k} {cfg.wq_flags} lds'])
            post = ['s_add_u32 s50, s50, 1', 's_add_u32 s48, s48, 128', 's_add_u32 s49, s49, 786432',
                    's_cmp_eq_u32 s50, 10', 's_cselect_b32 s53, 1280, 0', 's_cselect_b32 s54, 7864320, 0', 's_cselect_b32 s50, 0, s50',
                    's_sub_u32 s48, s48, s53', 's_sub_u32 s49, s49, s54']
            if j == 9: post.append('s_add_u32 s49, s49, 384')
            A[-1] = A[-1] + post
            return A
        def atoms_kv(isv, n):
            base = ((2 + n) % 6) * SLOT + (VOFF if isv else 0); A = []
            so = 's52' if isv else 's51'; srd = sV if isv else sK
            for i in range(12):
                pre = []
                if i % 4 == 0: pre = [f's_mov_b32 m0, {base + 1024 * i}'] + ([f's_add_u32 {so}, {so}, 4096'] if i else ['s_nop 0'])
                v = (16 + i % 3) if isv else (10 + i % 6)
                A.append(pre + [f'buffer_load_dwordx4 v{v}, {srd}, {so} offen offset:{1024*(i%4)} {cfg.kv_flags} lds'])
            A[-1] = A[-1] + [f's_add_u32 {so}, {so}, 4096']
            return A
        for h in range(2):
            for j in range(10):
                p = j % 3; t = tix[(h, 'q', j)]
                items.append(dict(name=f'Q{h}.{j}', atoms=atoms_q(h, j), reg={(2*p, 0), (2*p, 1), (2*p+1, 0), (2*p+1, 1)}, need=t, rel=t + 1))
            seq = []
            for n in range(16):
                sl = (2 + n) % 6
                tk = tix[(h, 'a', n)]
                seq.append(dict(name=f'K{h}.{n}', atoms=atoms_kv(False, n), reg={(sl, 0)}, need=tk - (cfg.RA if n > 0 else 0), rel=tk + 1, o=0))
                seq.append(dict(name=f'V{h}.{n}', atoms=atoms_kv(True, n), reg={(sl, 1)}, need=tk + 1, rel=tk + 2, o=1))
            seq.sort(key=lambda d: (d['need'], d['o']))
            items += seq
        def atoms_wo(u):
            A = []
            for i in range(20):
                pre = []
                if i == 0:
                    pre = [f's_add_u32 s56, s55, {u}', 's_lshr_b32 s57, s56, 1', 's_and_b32 s58, s56, 1',
                           's_mul_i32 s53, s57, 40960', 's_mul_i32 s54, s58, 640', 's_add_u32 s53, s53, s54',
                           's_lshl_b32 s54, s32, 1', 's_add_u32 s54, s54, s58', 's_mul_i32 s54, s54, 768',
                           's_add_u32 s54, s54, s57', 's_mul_i32 s54, s54, 5120', f's_add_u32 s{59+u}, s54, {WOF}']
                pre += [f's_mov_b32 m0, {u * SLOT + 1024 * i}', 's_add_u32 s53, s53, 10240' if (i and i % 5 == 0) else 's_nop 0']
                A.append(pre + [f'buffer_load_dwordx4 v{28 + i % 5}, {sWO}, s53 offen {cfg.wo_flags} lds'])
            return A
        for u in range(3):
            items.append(dict(name=f'WO{u}', atoms=atoms_wo(u), reg={(u, 0), (u, 1)}, need=NT + 5, rel=NT + 9))
        P('s_and_b32 s53, s2, 3')
        P('s_lshl_b32 s53, s53, 5')
        P('s_lshr_b32 s54, s2, 3')
        P('s_add_u32 s53, s53, s54')
        P('s_mul_i32 s55, s53, 3')
        busy = {}
        issued = 0
        landed = 0
        endpos = []
        qi = 0; ai = 0
        cum = 0
        for it in items:
            cum += len(it['atoms']); it['end'] = cum
        def need_end(t):
            e = [it['end'] for it in items if it['need'] <= t]
            return e[-1] if e else 0
        def issue(t):
            nonlocal qi, ai, issued, landed
            lim = need_end(t + 1) + cfg.maxout if cfg.roll else max(landed + cfg.maxout, need_end(t + 1))
            while qi < len(items):
                it = items[qi]
                if ai == 0 and any(busy.get(r, -1) > t for r in it['reg']): return
                if issued >= lim: return
                if issued - landed >= cfg.maxout:
                    P(f's_waitcnt vmcnt({cfg.maxout - 4})'); landed = issued - (cfg.maxout - 4)
                if ai == 0:
                    P(f'; item {it["name"]}')
                    for r in it['reg']: busy[r] = it['rel']
                for x in it['atoms'][ai]: P(x)
                issued += 1; ai += 1
                if ai == len(it['atoms']):
                    qi += 1; ai = 0
        issue(-1)
        for t in range(NT):
            e = need_end(t)
            assert issued >= e, (t, issued, e)
            if e > landed:
                P(f's_waitcnt vmcnt({issued - e})'); landed = e
            P(f's_barrier ; B{t} {steps[t]}')
            issue(t)
        if qi < len(items):
            P('s_waitcnt vmcnt(0)'); landed = issued; issue(NT)
        assert qi == len(items)
        P('v_lshrrev_b32 v3, 2, v1')
        P('v_mul_u32_u24 v3, 640, v3')
        P('v_and_b32 v4, 3, v1')
        P('v_lshl_add_u32 v3, v4, 3, v3')
        for u in range(3):
            P('s_waitcnt vmcnt(40)')
            for nt in range(20):
                b = 40 + 4 * nt
                P(f'ds_read_b64_tr_b16 {r2(b)}, v3 offset:{u * SLOT + 32 * nt}')
                P(f'ds_read_b64_tr_b16 {r2(b + 2)}, v3 offset:{u * SLOT + 32 * nt + 10240}')
            for nt in range(20):
                b = 40 + 4 * nt
                if nt and nt % 5 == 0: P(f's_add_u32 s{59+u}, s{59+u}, {192 * 5120 - 1024 * 4}')
                elif nt % 5 == 4: P(f's_add_u32 s{59+u}, s{59+u}, 4096')
                P(f'buffer_store_dwordx4 {r4(b)}, v2, {sWS}, s{59+u} offen offset:{1024 * (nt % 5) if nt % 5 < 4 else 0} {cfg.wof_store_flags}')
        P('s_endpgm')

    def gen(self):
        cfg = self.cfg; P = self.P
        P('s_cmp_ge_u32 s2, 256')
        P('s_cbranch_scc1 L_exit1')
        P('s_load_dwordx16 s[64:79], s[0:1], 0')
        P('s_load_dwordx4 s[80:83], s[0:1], 64')
        P('s_load_dwordx2 s[84:85], s[0:1], 96')
        P('v_lshrrev_b32 v1, 6, v0')
        P('v_and_b32 v2, 63, v0')
        P('v_readfirstlane_b32 s3, v1')
        P('s_getpc_b64 s[4:5]')
        P('s_cmp_eq_u32 s3, 7')
        P('s_cbranch_scc1 L_nopf')
        P('v_lshlrev_b32 v3, 7, v0')
        P('global_load_dword v255, v3, s[4:5]')
        P('L_nopf:')
        P('s_and_b32 s6, s2, 7')
        P('s_lshr_b32 s7, s2, 3')
        P('s_lshr_b32 s32, s6, 2')
        P('s_lshr_b32 s33, s7, 2')
        P('s_and_b32 s34, s6, 3')
        P('s_lshl_b32 s34, s34, 2')
        P('s_and_b32 s35, s7, 3')
        P('s_add_u32 s34, s34, s35')
        if cfg.rot:
            P('s_lshl_b32 s50, s35, 1')
            P('s_add_u32 s50, s50, s33')
            P('s_cmp_ge_u32 s50, 10')
            P('s_cselect_b32 s35, 10, 0')
            P('s_sub_u32 s50, s50, s35')
        else:
            P('s_mov_b32 s50, 0')
        P(f's_mov_b32 s36, {f2h(math.log2(math.e) / math.sqrt(192.0))}')
        P(f's_mov_b32 s37, {f2h(cfg.thr)}')
        P('s_waitcnt lgkmcnt(0)')
        P('s_cmp_eq_u32 s32, 0')
        for (srd, a, b, size) in ((8, 64, 74, 2293760), (16, 66, 76, 50331648), (20, 68, 78, 50331648), (12, 70, 80, 7864320), (28, 72, 82, 7864320)):
            P(f's_cselect_b32 s{srd}, s{a}, s{b}')
            P(f's_cselect_b32 s{srd+1}, s{a+1}, s{b+1}')
            P(f's_mov_b32 s{srd+2}, {size}')
            P(f's_mov_b32 s{srd+3}, 0x20000')
        P('s_mov_b32 s24, s84'); P('s_mov_b32 s25, s85'); P('s_mov_b32 s26, 0x10000000'); P('s_mov_b32 s27, 0x20000')
        P('s_cmp_eq_u32 s3, 7')
        P('s_cbranch_scc1 L_loader')
        P('v_and_b32 v3, 15, v2')
        P('v_lshrrev_b32 v5, 4, v2')
        P('v_lshrrev_b32 v6, 1, v3')
        P('v_xor_b32 v7, v5, v6')
        P('v_lshlrev_b32 v7, 4, v7')
        P('v_mul_u32_u24 v8, 384, v3')
        P('v_add_u32 v7, v7, v8')
        P(f'v_add_u32 v{VK[0]}, {2 * SLOT}, v7')
        P(f'v_xor_b32 v{VK[1]}, 64, v{VK[0]}')
        P('v_lshrrev_b32 v7, 2, v2')
        P('v_mul_u32_u24 v7, 384, v7')
        P('v_bfe_u32 v8, v2, 3, 2')
        P('v_lshl_add_u32 v7, v8, 5, v7')
        P('v_and_b32 v8, 3, v2')
        P(f'v_lshl_add_u32 v{VT[0]}, v8, 3, v7')
        for m in range(1, 4): P(f'v_xor_b32 v{VT[m]}, {32 * m}, v{VT[0]}')
        P('v_lshrrev_b32 v7, 1, v5')
        P('v_xor_b32 v7, v7, v6')
        P('v_lshlrev_b32 v7, 4, v7')
        P('v_and_b32 v8, 1, v5')
        P('v_lshl_add_u32 v7, v8, 3, v7')
        P('v_lshl_add_u32 v7, v3, 7, v7')
        P('s_lshl_b32 s38, s3, 12')
        P(f's_add_u32 s38, s38, {XOFF}')
        P(f'v_add_u32 v{VX[0]}, s38, v7')
        for m in range(1, 4): P(f'v_xor_b32 v{VX[m]}, {32 * m}, v{VX[0]}')
        P(f'v_lshlrev_b32 v{VLANE16}, 4, v2')
        P('s_lshl_b32 s38, s32, 3')
        P('s_add_u32 s38, s38, s33')
        P('s_mul_i32 s38, s38, 2752512')
        P('s_mul_i32 s39, s34, 86016')
        P('s_add_u32 s38, s38, s39')
        for c in range(2):
            P(f's_lshl_b32 s39, s3, 1')
            if c: P('s_add_u32 s39, s39, 1')
            P('s_cmp_ge_u32 s39, 7')
            P(f's_cselect_b32 s40, {192 * 7168 - 7 * 1024}, 0')
            P('s_lshl_b32 s39, s39, 10')
            P('s_add_u32 s39, s39, s40')
            P(f's_add_u32 s{44+c}, s38, s39')
        P('s_mov_b32 s42, 0')
        P(f's_mov_b32 s46, {PAIR}')
        P(f's_mov_b32 s47, {SLOT}')
        P('L_head:')
        self.stamp()
        self.pv_first = False
        self.qstep(first=True, delta=PAIR)
        P('s_mov_b32 s38, 1')
        P('s_mov_b32 s39, 8')
        P('L_qloop:')
        P('s_cmp_eq_u32 s38, 2')
        P(f's_cselect_b32 s40, {(-2 * PAIR) & 0xffffffff}, s46')
        P('s_add_u32 s38, s38, 1')
        P('s_cmp_eq_u32 s38, 3')
        P('s_cselect_b32 s38, 0, s38')
        self.qstep(delta='s40')
        P('s_sub_u32 s39, s39, 1')
        P('s_cmp_lg_u32 s39, 0')
        P('s_cbranch_scc1 L_qloop')
        self.stamp()
        self.qstep(last=True, delta=[(v, 2 * SLOT + VOFF) for v in VT])
        self.stamp()
        if cfg.dumpq:
            for s in range(6):
                for c in range(2):
                    P(f's_add_u32 s38, s{44+c}, {0x5000000 + 7168 * s}')
                    P(f'buffer_store_dwordx4 {r4(QF(s, c))}, v{VLANE16}, {sWS}, s38 offen')
        RA = bool(cfg.RA)
        self.astep('first', 1, 'a0', dK=SLOT, ra_out=RA)
        self.stamp()
        self.pv_first = True
        self.astep('mid', 0, 'a1', dK=SLOT, dV=SLOT, ra_in=RA, ra_out=RA)
        self.pv_first = False
        P('s_mov_b32 s38, 4')
        P(f's_mov_b32 s41, {SLOT}')
        P('s_mov_b32 s39, 7')
        P('L_aloop:')
        for par, nm in ((1, 'ae'), (0, 'ao')):
            P('s_mov_b32 s43, s41')
            P('s_cmp_eq_u32 s38, 5')
            P(f's_cselect_b32 s41, {(-5 * SLOT) & 0xffffffff}, s47')
            P('s_add_u32 s38, s38, 1')
            P('s_cmp_eq_u32 s38, 6')
            P('s_cselect_b32 s38, 0, s38')
            if nm == 'ao':
                self.last_ra = True
            self.astep('mid', par, nm, dK='s41', dV='s43', ra_in=RA, ra_out=RA)
        P('s_sub_u32 s39, s39, 1')
        P('s_cmp_lg_u32 s39, 0')
        P('s_cbranch_scc1 L_aloop')
        P('s_waitcnt lgkmcnt(0)')
        self.stamp()
        self.astep('final', 1, 'af', dV=[(v, (-(5 * SLOT + VOFF)) & 0xffffffff) for v in VT] + [(v, 2 * SLOT) for v in VK])
        self.stamp()
        P('s_add_u32 s42, s42, 1')
        P('s_cmp_lt_u32 s42, 2')
        P('s_cbranch_scc1 L_head')
        if cfg.stamps:
            P('s_lshl_b32 s38, s2, 3'); P('s_add_u32 s38, s38, s3'); P('s_lshl_b32 s38, s38, 7')
            P(f's_add_u32 s38, s38, {STAMPOFF}')
            P('v_mov_b32 v1, 0')
            for k in range(32):
                P(f'v_mov_b32 v2, s{64+k}')
                P(f'buffer_store_dword v2, v1, {sWS}, s38 offen offset:{4*k}')
        P('L_exit1:')
        P('s_endpgm')
        for name, par in self.rare: self.rare_block(name, par)
        self.loader()
        return P.finish()

class K2Gen:
    def __init__(self, cfg): self.cfg = cfg; self.P = Prog()
    def gen(self):
        cfg = self.cfg; P = self.P
        NB = 5
        def acc(nt, qt): return 4 * (nt * 7 + qt)
        def wf(st, nt): return f'a[{48*st + 4*nt}:{48*st + 4*nt + 3}]'
        def of(st, qt): return f'a[{48*st + 20 + 4*qt}:{48*st + 23 + 4*qt}]'
        P('s_cmp_ge_u32 s2, 256')
        P('s_cbranch_scc1 L_exit2')
        P('s_load_dwordx2 s[4:5], s[0:1], 80')
        P('s_load_dwordx2 s[6:7], s[0:1], 96')
        P('v_lshrrev_b32 v141, 6, v0')
        P('v_and_b32 v140, 63, v0')
        P('v_readfirstlane_b32 s3, v141')
        P('s_getpc_b64 s[16:17]')
        P('v_lshlrev_b32 v142, 7, v0')
        P('global_load_dword v143, v142, s[16:17]')
        P('v_lshlrev_b32 v144, 4, v140')
        P('s_and_b32 s20, s2, 7')
        P('s_lshr_b32 s21, s2, 3')
        P('s_lshr_b32 s22, s20, 2')
        P('s_and_b32 s23, s20, 3')
        P('s_lshl_b32 s23, s23, 2')
        P('s_lshr_b32 s24, s21, 3')
        P('s_add_u32 s23, s23, s24')
        P('s_and_b32 s24, s21, 7')
        P('s_mul_i32 s25, s3, 48')
        P('s_lshl_b32 s26, s22, 4'); P('s_add_u32 s26, s26, s23'); P('s_mul_i32 s26, s26, 192'); P('s_add_u32 s26, s26, s25'); P('s_mul_i32 s26, s26, 7168')
        P('s_lshl_b32 s27, s22, 3'); P('s_add_u32 s27, s27, s24'); P('s_mul_i32 s27, s27, 192'); P('s_add_u32 s27, s27, s25'); P('s_mul_i32 s27, s27, 5120')
        P(f's_add_u32 s27, s27, {WOF}')
        P('s_add_u32 s28, s26, 4096'); P('s_add_u32 s29, s27, 4096')
        P('s_waitcnt lgkmcnt(0)')
        P('s_mov_b32 s8, s6'); P('s_mov_b32 s9, s7'); P('s_mov_b32 s10, 0x10000000'); P('s_mov_b32 s11, 0x20000')
        P('s_mov_b32 s12, s4'); P('s_mov_b32 s13, s5'); P('s_mov_b32 s14, 4587520'); P('s_mov_b32 s15, 0x20000')
        def loads(k):
            st = k % NB; L = []
            for nt in range(5):
                L.append(f'buffer_load_dwordx4 {wf(st, nt)}, v144, s[8:11], ' + (f's27 offen offset:{1024*nt}' if nt < 4 else 's29 offen') + f' {cfg.k2_w_flags}')
            for qt in range(7):
                L.append(f'buffer_load_dwordx4 {of(st, qt)}, v144, s[8:11], ' + (f's26 offen offset:{1024*qt}' if qt < 4 else f's28 offen offset:{1024*(qt-4)}') + f' {cfg.k2_o_flags}')
            L.append('s_add_u32 s26, s26, 7168\ns_add_u32 s28, s28, 7168\ns_add_u32 s27, s27, 5120\ns_add_u32 s29, s29, 5120')
            return L
        for k in range(NB - 1):
            for x in loads(k): P(x)
        for k in range(48):
            S = Sched(); st = k % NB
            for qt in range(7):
                for nt in range(5):
                    d = acc(nt, qt)
                    S.add(f'v_mfma_f32_16x16x32_bf16 v[{d}:{d+3}], {wf(st, nt)}, {of(st, qt)}, ' + (f'v[{d}:{d+3}]' if k else '0'))
            if k + NB - 1 < 48:
                for j, x in enumerate(loads(k + NB - 1)): S.at(2 + 2 * j, x)
            S.emit(P)
        P('s_mul_i32 s30, s3, 35840')
        P('v_add_u32 v145, s30, v144')
        for w in range(4):
            P(f's_cmp_eq_u32 s3, {w}')
            P(f's_cbranch_scc1 L_red{w}')
        for w in range(4):
            P(f'L_red{w}:')
            for t in range(35):
                if t % 4 != w: P(f'ds_write_b128 v145, v[{4*t}:{4*t+3}] offset:{1024*t}')
            P('v_and_b32 v146, 15, v140')
            P('v_mul_u32_u24 v146, 2560, v146')
            P('v_lshrrev_b32 v147, 4, v140')
            P('v_lshl_add_u32 v146, v147, 3, v146')
            P('s_mul_i32 s30, s23, 286720')
            P('s_mul_i32 s31, s22, 1280')
            P('s_add_u32 s30, s30, s31')
            P('s_mul_i32 s31, s24, 160')
            P('s_add_u32 s30, s30, s31')
            P('s_waitcnt lgkmcnt(0)')
            P('s_barrier')
            mine = [t for t in range(35) if t % 4 == w]
            others = [x for x in range(4) if x != w]
            for k in range(1, 4): P(f'v_add_u32 v{147+k}, {35840 * k}, v144')
            def rdp(b, ow, t): P(f'ds_read_b128 v[{b}:{b+3}], v{[144, 148, 149, 150][ow]} offset:{1024 * t}')
            for i, t in enumerate(mine[:8]):
                for j, ow in enumerate(others): rdp(152 + 12 * i + 4 * j, ow, t)
            for i, t in enumerate(mine):
                if i == 8:
                    for j, ow in enumerate(others): rdp(152 + 4 * j, ow, t)
                b = 152 + 12 * (i % 8)
                for r in range(4):
                    P(f'v_add_f32 v{4*t+r}, v{4*t+r}, v{b+r}')
                    P(f'v_add_f32 v{b+4+r}, v{b+4+r}, v{b+8+r}')
                for r in range(4): P(f'v_add_f32 v{4*t+r}, v{4*t+r}, v{b+4+r}')
                P(f'v_cvt_pk_bf16_f32 v{4*t}, v{4*t}, v{4*t+1}')
                P(f'v_cvt_pk_bf16_f32 v{4*t+1}, v{4*t+2}, v{4*t+3}')
                nt, qt = t // 7, t % 7
                P(f's_add_u32 s31, s30, {qt * 16 * 2560}')
                P(f'buffer_store_dwordx2 v[{4*t}:{4*t+1}], v146, s[12:15], s31 offen offset:{32*nt}')
            P('s_endpgm')
        P('L_exit2:')
        P('s_endpgm')
        return P.finish()

def desc(name, vgpr, sgpr, accum):
    return f'''.section .rodata,"a"
.p2align 6
.amdhsa_kernel {name}
  .amdhsa_next_free_vgpr {vgpr}
  .amdhsa_next_free_sgpr {sgpr}
  .amdhsa_accum_offset {accum}
  .amdhsa_group_segment_fixed_size 0
  .amdhsa_kernarg_size 104
  .amdhsa_user_sgpr_count 2
  .amdhsa_user_sgpr_kernarg_segment_ptr 1
  .amdhsa_system_sgpr_workgroup_id_x 1
.end_amdhsa_kernel
'''

def build(cfg, path):
    hdr = [l for l in open('concat_heads__gqa_block_cached__gqa_block_cached__near_ridge.s.ref').read().split('\n') if l.startswith(';') and '@launch' not in l]
    k1 = K1Gen(cfg).gen(); k2 = K2Gen(cfg).gen()
    o = '\n'.join(hdr[:15]) + '\n'
    o += f'; @launch kernel={K1} grid=(256,1,1) block=(512,1,1) lds={LDS1}\n'
    o += f'; @launch kernel={K2} grid=(256,1,1) block=(256,1,1) lds={4*35840}\n'
    o += '.amdgcn_target "amdgcn-amd-amdhsa--gfx950"\n.text\n'
    for name, ins in ((K1, k1), (K2, k2)):
        o += f'.globl {name}\n.p2align 8\n.type {name},@function\n{name}:\n' + Prog.text(ins)
    o += '.p2align 8\n.fill 16384, 4, 0xbf800000\n'
    o += desc(K1, 256, 102, 256) + desc(K2, 512, 48, 256)
    open(path, 'w').write(o)
    return k1, k2

if __name__ == '__main__':
    cfg = Cfg()
    for a in sys.argv[2:]:
        k, v = a.split('=', 1)
        cur = getattr(cfg, k)
        setattr(cfg, k, (v if isinstance(cur, str) else type(cur)(eval(v))))
    k1, k2 = build(cfg, sys.argv[1])
    for nm, k in (('k1', k1), ('k2', k2)):
        n = sum(1 for x in k if x.kind not in ('label', 'dir'))
        nn = sum(x.n for x in k if x.kind == 'nop')
        print(nm, 'instrs', n, 'nop states', nn)
    sys.path.insert(0, 'exp')
    import asmlib
    asmlib.build(sys.argv[1])
```
